```python
import torch

def _softmax(x, axis=-1):
    return torch.softmax(x, dim=axis)
def _gelu(x):
    return torch.nn.functional.gelu(x, approximate="tanh")
def _silu(x):
    return torch.nn.functional.silu(x)
def _sigmoid(x):
    return torch.sigmoid(x)
def _layernorm(x, axis=-1, eps=1e-5):
    m = x.mean(dim=axis, keepdim=True)
    v = x.var(dim=axis, keepdim=True, unbiased=False)
    return (x - m) / torch.sqrt(v + eps)
def _scatter_add(tgt, idx, src, axis=0):
    return tgt.clone().index_add_(axis, idx, src)
def _segment_sum(src, seg, n):
    out = torch.zeros((n,) + src.shape[1:], dtype=src.dtype)
    return out.index_add_(0, seg, src)
def _pad(x, pw):
    flat = tuple(v for pair in reversed(pw) for v in pair)
    return torch.nn.functional.pad(x, flat)

kernel_name = 'standalone__instancenorm__prompt'

def setup_inputs():

    _w = (lambda a: (lambda t: t.to(torch.bfloat16) if t.is_floating_point() else t)(torch.as_tensor(a)))
    B, C, H, W = 1, 576, 2048, 32
    return {
        "x": _w(abs((lambda *s: torch.randn(*s, dtype=torch.bfloat16) * 0.05)(B, C, H, W))),
        "g": _w((lambda *s: torch.randn(*s, dtype=torch.bfloat16) * 0.05)(C) + 1.0),
        "b": _w((lambda *s: torch.randn(*s, dtype=torch.bfloat16) * 0.4)(C)),
    }

def reference(x, g, b):
    mu = x.mean(axis=(-2, -1), keepdims=True)
    var = ((x - mu) ** 2).mean(axis=(-2, -1), keepdims=True)
    xhat = (x - mu) / torch.sqrt(var + 1e-5)
    return xhat * g.reshape(1, -1, 1, 1) + b.reshape(1, -1, 1, 1)
```

```python
def readout(nent, q, K=20, C=6000):
    per = (nent + 63) // 64
    o = []
    A = o.append
    A(".globl readout_kernel")
    A(".p2align 8")
    A(".type readout_kernel,@function")
    A("readout_kernel:")
    A("    s_memrealtime s[20:21]")
    A("    s_cmp_ge_u32 s2, 1")
    A("    s_cbranch_scc1 R_done")
    A("    s_load_dwordx2 s[4:5], s[0:1], 40")
    A("    s_load_dwordx2 s[12:13], s[0:1], 32")
    A("    s_waitcnt lgkmcnt(0)")
    A(f"    s_mov_b32 s6, {nent*16}")
    A("    s_mov_b32 s7, 0x20000")
    A("    s_load_dword s8, s[4:5], 0")
    A("    v_lshlrev_b32 v1, 4, v0")
    A("    v_mov_b32 v8, 0x7fffffff")
    A("    v_mov_b32 v9, 0x80000000")
    A("    v_mov_b32 v10, 0x7fffffff")
    A("    v_mov_b32 v11, 0x80000000")
    A("    v_mov_b32 v12, 0x7fffffff")
    A("    v_mov_b32 v13, 0x80000000")
    A(f"    s_mov_b32 s9, {per}")
    A("    s_waitcnt lgkmcnt(0)")
    A("R_loop:")
    A("    buffer_load_dwordx4 v[4:7], v1, s[4:7], 0 offen")
    A("    s_waitcnt vmcnt(0)")
    A("    v_subrev_u32 v4, s8, v4")
    A("    v_subrev_u32 v5, s8, v5")
    A("    v_subrev_u32 v6, s8, v6")
    A("    v_min_i32 v8, v8, v4")
    A("    v_max_i32 v9, v9, v4")
    A("    v_min_i32 v10, v10, v5")
    A("    v_max_i32 v11, v11, v5")
    A("    v_min_i32 v12, v12, v6")
    A("    v_max_i32 v13, v13, v6")
    A("    v_add_u32 v1, 1024, v1")
    A("    s_sub_u32 s9, s9, 1")
    A("    s_cmp_lg_u32 s9, 0")
    A("    s_cbranch_scc1 R_loop")
    A("    s_mov_b32 s30, 0x7fffffff")
    A("    s_mov_b32 s31, 0x80000000")
    A("    s_mov_b32 s32, 0x7fffffff")
    A("    s_mov_b32 s33, 0x80000000")
    A("    s_mov_b32 s34, 0x7fffffff")
    A("    s_mov_b32 s35, 0x80000000")
    A("    s_mov_b32 s9, 0")
    A("R_red:")
    A("    s_nop 4")
    A("    v_readlane_b32 s40, v8, s9")
    A("    v_readlane_b32 s41, v9, s9")
    A("    v_readlane_b32 s42, v10, s9")
    A("    v_readlane_b32 s43, v11, s9")
    A("    v_readlane_b32 s44, v12, s9")
    A("    v_readlane_b32 s45, v13, s9")
    A("    s_nop 4")
    A("    s_min_i32 s30, s30, s40")
    A("    s_max_i32 s31, s31, s41")
    A("    s_min_i32 s32, s32, s42")
    A("    s_max_i32 s33, s33, s43")
    A("    s_min_i32 s34, s34, s44")
    A("    s_max_i32 s35, s35, s45")
    A("    s_add_u32 s9, s9, 1")
    A("    s_cmp_lt_u32 s9, 64")
    A("    s_cbranch_scc1 R_red")
    A("    s_sub_u32 s36, s20, s8")
    A("    s_sub_u32 s31, s31, s30")
    A("    s_sub_u32 s32, s32, s30")
    A("    s_sub_u32 s33, s33, s30")
    A("    s_sub_u32 s34, s34, s30")
    A("    s_sub_u32 s35, s35, s30")
    A("    s_sub_u32 s36, s36, s30")
    for i, r in enumerate([31, 32, 33, 34, 35, 36]):
        A(f"    v_mov_b32 v{16+i}, s{r}")
    A("    v_mov_b32 v1, 0")
    A("    s_mov_b64 exec, 1")
    A("    global_store_dwordx4 v1, v[16:19], s[12:13]")
    A("    global_store_dwordx2 v1, v[20:21], s[12:13] offset:16")
    sel = {0: 35, 1: 31, 2: 33, 3: 32, 4: 36, 5: 34}.get(q)
    if sel is not None:
        A(f"    s_min_u32 s37, s{sel}, 10000")
        A(f"    s_mul_i32 s37, s37, {K}")
        A(f"    s_add_u32 s37, s37, {C}")
        A("R_spin:")
        A("    s_memrealtime s[24:25]")
        A("    s_waitcnt lgkmcnt(0)")
        A("    s_sub_u32 s26, s24, s20")
        A("    s_cmp_lt_u32 s26, s37")
        A("    s_cbranch_scc1 R_spin")
    A("R_done:")
    A("    s_endpgm")
    return o

def readout_kd():
    return """.p2align 6
.amdhsa_kernel readout_kernel
  .amdhsa_next_free_vgpr 32
  .amdhsa_next_free_sgpr 64
  .amdhsa_accum_offset 32
  .amdhsa_group_segment_fixed_size 0
  .amdhsa_kernarg_size 48
  .amdhsa_user_sgpr_count 2
  .amdhsa_user_sgpr_kernarg_segment_ptr 1
  .amdhsa_system_sgpr_workgroup_id_x 1
.end_amdhsa_kernel""".split("\n")
```

```python
import argparse, sys

HDR = """; Kernarg layout for this problem (48 bytes, ptrs only, base s[0:1]):
"""
NAME = "standalone__instancenorm__prompt_kernel"

from diag import readout, readout_kd

def gen(T=512, ld="", st="", layout="wave", lds=None, dbg=False, vgpr_pad=0, stamp=None):
    NW = T // 64
    R = 131072 // (T * 16)
    o = []
    A = o.append
    ldsb = lds if lds is not None else NW * 8
    A(HDR.rstrip())
    if stamp is None:
        A(f"; @launch grid=(576,1,1) block=({T},1,1) lds={ldsb}")
    elif stamp < 0:
        A(f"; @launch grid=(576,1,1) block=({T},1,1) lds={ldsb}")
    else:
        A(f"; @launch kernel={NAME} grid=(576,1,1) block=({T},1,1) lds={ldsb}")
        A(f"; @launch kernel=readout_kernel grid=(1,1,1) block=(64,1,1) lds=0")
    A('.amdgcn_target "amdgcn-amd-amdhsa--gfx950"')
    A(".text")
    A(f".globl {NAME}")
    A(".p2align 8")
    A(f".type {NAME},@function")
    A(f"{NAME}:")
    A("    s_cmp_ge_u32 s2, 576")
    A("    s_cbranch_scc1 L_done")
    if stamp is not None:
        A("    s_memrealtime s[70:71]")
        A("    s_load_dwordx2 s[76:77], s[0:1], 40")
    A("    s_load_dwordx4 s[4:7], s[0:1], 0       ; x, g")
    A("    s_load_dwordx4 s[8:11], s[0:1], 16     ; b, out")
    D0 = 16
    if layout == "wave":
        A("    v_lshrrev_b32 v2, 6, v0                ; wave id")
        A("    v_and_b32 v3, 63, v0                   ; lane")
        A(f"    v_lshlrev_b32 v1, {(R*1024).bit_length()-1}, v2")
        A("    v_lshl_add_u32 v1, v3, 4, v1           ; wave*R*1024 + lane*16")
        offs = [(j * 1024 // 4096 * 4096, j * 1024 % 4096) for j in range(R)]
    else:
        A("    v_lshrrev_b32 v2, 6, v0                ; wave id")
        A("    v_lshlrev_b32 v1, 4, v0                ; tid*16")
        offs = [(j * T * 16, 0) for j in range(R)]
    souts = sorted(set(s for s, _ in offs if s))
    sreg = {0: "0"}
    for i, s in enumerate(souts):
        sreg[s] = f"s{32+i}"
        A(f"    s_mov_b32 s{32+i}, {s}")
    A("    s_lshl_b32 s3, s2, 17")
    A("    s_lshl_b32 s28, s2, 1")
    A("    s_and_b32 s28, s28, 0xfffffffc")
    A("    s_waitcnt lgkmcnt(0)")
    A("    s_load_dword s24, s[6:7], s28")
    A("    s_load_dword s25, s[8:9], s28")
    A("    s_add_u32 s12, s4, s3")
    A("    s_addc_u32 s13, s5, 0")
    A("    s_mov_b32 s14, 0x20000")
    A("    s_mov_b32 s15, 0x20000")
    for j in range(R):
        s, im = offs[j]
        A(f"    buffer_load_dwordx4 v[{D0+4*j}:{D0+4*j+3}], v1, s[12:15], {sreg[s]} offen offset:{im} {ld}".rstrip())
    A("    s_add_u32 s16, s10, s3")
    A("    s_addc_u32 s17, s11, 0")
    A("    s_mov_b32 s18, 0x20000")
    A("    s_mov_b32 s19, 0x20000")
    A("    s_mov_b32 s26, 0x3f803f80              ; bf16 (1.0, 1.0)")
    for r in range(4, 12):
        A(f"    v_mov_b32 v{r}, 0")
    A("    v_lshlrev_b32 v2, 3, v2                ; LDS slot of this wave")
    for j in range(R):
        A(f"    s_waitcnt vmcnt({R-1-j})")
        for k in range(4):
            A(f"    v_dot2c_f32_bf16 v{4+k}, s26, v{D0+4*j+k}")
        for k in range(4):
            A(f"    v_dot2c_f32_bf16 v{8+k}, v{D0+4*j+k}, v{D0+4*j+k}")
    if stamp is not None:
        A("    s_memrealtime s[72:73]")
    A("    s_nop 2")
    A("    v_pk_add_f32 v[4:5], v[4:5], v[6:7]")
    A("    v_pk_add_f32 v[8:9], v[8:9], v[10:11]")
    A("    v_add_f32 v4, v4, v5")
    A("    v_add_f32 v5, v8, v9")
    for dpp in ["quad_perm:[1,0,3,2]", "quad_perm:[2,3,0,1]", "row_half_mirror", "row_mirror"]:
        A("    s_nop 1")
        A(f"    v_add_f32_dpp v4, v4, v4 {dpp} row_mask:0xf bank_mask:0xf")
        A(f"    v_add_f32_dpp v5, v5, v5 {dpp} row_mask:0xf bank_mask:0xf")
    A("    s_nop 1")
    A("    v_add_f32_dpp v4, v4, v4 row_bcast:15 row_mask:0xa bank_mask:0xf")
    A("    v_add_f32_dpp v5, v5, v5 row_bcast:15 row_mask:0xa bank_mask:0xf")
    A("    s_nop 1")
    A("    v_add_f32_dpp v4, v4, v4 row_bcast:31 row_mask:0xc bank_mask:0xf")
    A("    v_add_f32_dpp v5, v5, v5 row_bcast:31 row_mask:0xc bank_mask:0xf")
    A("    s_mov_b64 s[30:31], exec")
    A("    s_mov_b32 exec_lo, 0")
    A("    s_mov_b32 exec_hi, 0x80000000")
    A("    ds_write_b64 v2, v[4:5]")
    A("    s_mov_b64 exec, s[30:31]")
    A("    v_mov_b32 v3, 0")
    A("    s_waitcnt lgkmcnt(0)")
    A("    s_barrier")
    nrd = NW * 8 // 16
    first = True
    for g in range(0, nrd, 2):
        A(f"    ds_read_b128 v[4:7], v3 offset:{g*16}")
        if g + 1 < nrd:
            A(f"    ds_read_b128 v[8:11], v3 offset:{(g+1)*16}")
        A("    s_waitcnt lgkmcnt(0)")
        A("    v_pk_add_f32 v[4:5], v[4:5], v[6:7]")
        if g + 1 < nrd:
            A("    v_pk_add_f32 v[8:9], v[8:9], v[10:11]")
            A("    v_pk_add_f32 v[4:5], v[4:5], v[8:9]")
        if first:
            A("    v_mov_b32 v12, v4")
            A("    v_mov_b32 v13, v5")
            first = False
        else:
            A("    v_pk_add_f32 v[12:13], v[12:13], v[4:5]")
    A("    s_bitcmp1_b32 s2, 0")
    A("    s_cselect_b32 s27, 0, 16")
    A("    s_lshl_b32 s24, s24, s27")
    A("    s_lshl_b32 s25, s25, s27")
    A("    s_and_b32 s24, s24, 0xffff0000")
    A("    s_and_b32 s25, s25, 0xffff0000")
    A("    v_mul_f32 v12, 0x37800000, v12")
    A("    v_mul_f32 v13, 0x37800000, v13          ; E[x^2]")
    A("    v_fma_f32 v13, -v12, v12, v13           ; var")
    A("    v_max_f32 v13, 0, v13")
    A("    v_add_f32 v13, 0x3727c5ac, v13          ; + 1e-5")
    A("    v_rsq_f32 v13, v13")
    A("    s_mov_b32 s29, 0xffff0000")
    A("    v_mul_f32 v4, s24, v13")
    A("    v_mov_b32 v6, s25")
    A("    v_fma_f32 v6, -v12, v4, v6")
    for j in range(R):
        for k in range(4):
            d = D0 + 4 * j + k
            t = 8 + 2 * k
            A(f"    v_lshlrev_b32 v{t}, 16, v{d}")
            A(f"    v_and_b32 v{t+1}, s29, v{d}")
        for k in range(4):
            t = 8 + 2 * k
            A(f"    v_pk_fma_f32 v[{t}:{t+1}], v[{t}:{t+1}], v[4:5], v[6:7] op_sel_hi:[1,0,0]")
        for k in range(4):
            d = D0 + 4 * j + k
            t = 8 + 2 * k
            A(f"    v_cvt_pk_bf16_f32 v{d}, v{t}, v{t+1}")
        s, im = offs[j]
        A(f"    buffer_store_dwordx4 v[{D0+4*j}:{D0+4*j+3}], v1, s[16:19], {sreg[s]} offen offset:{im} {st}".rstrip())
    if stamp is not None:
        A("    s_waitcnt vmcnt(0)")
        A("    s_memrealtime s[74:75]")
        A("    s_getreg_b32 s78, hwreg(HW_REG_HW_ID)")
        A("    s_getreg_b32 s79, hwreg(HW_REG_XCC_ID)")
        A("    s_lshl_b32 s79, s79, 24")
        A("    s_and_b32 s78, s78, 0xffffff")
        A("    s_or_b32 s78, s78, s79")
        A("    s_waitcnt lgkmcnt(0)")
        A("    v_mov_b32 v4, s70")
        A("    v_mov_b32 v5, s72")
        A("    v_mov_b32 v6, s74")
        A("    v_mov_b32 v7, s78")
        A(f"    s_lshl_b32 s3, s2, {(NW*16).bit_length()-1}")
        A("    v_lshl_add_u32 v2, v2, 1, s3           ; (wg*NW + wave)*16")
        A("    s_mov_b64 exec, 1")
        A("    global_store_dwordx4 v2, v[4:7], s[76:77]")
    A("L_done:")
    A("    s_endpgm")
    if stamp is not None and stamp >= 0:
        o.extend(readout(576 * NW, stamp))
    nv = D0 + 4 * R + vgpr_pad
    A('.section .rodata,"a"')
    A(".p2align 6")
    A(f".amdhsa_kernel {NAME}")
    A(f"  .amdhsa_next_free_vgpr {nv}")
    A(f"  .amdhsa_next_free_sgpr {80 if stamp is not None else max(40, 32+len(souts))}")
    A(f"  .amdhsa_accum_offset {(nv+3)//4*4}")
    A("  .amdhsa_group_segment_fixed_size 0")
    A("  .amdhsa_kernarg_size 48")
    A("  .amdhsa_user_sgpr_count 2")
    A("  .amdhsa_user_sgpr_kernarg_segment_ptr 1")
    A("  .amdhsa_system_sgpr_workgroup_id_x 1")
    A("  .amdhsa_float_denorm_mode_32 3")
    A(".end_amdhsa_kernel")
    if stamp is not None and stamp >= 0:
        o.extend(readout_kd())
    return "\n".join(o) + "\n"

if __name__ == "__main__":
    p = argparse.ArgumentParser()
    p.add_argument("-T", type=int, default=512)
    p.add_argument("--ld", default="")
    p.add_argument("--st", default="")
    p.add_argument("--layout", default="wave")
    p.add_argument("--lds", type=int, default=None)
    p.add_argument("--stamp", type=int, default=None)
    p.add_argument("-o", default=None)
    a = p.parse_args()
    s = gen(a.T, a.ld, a.st, a.layout, a.lds, stamp=a.stamp)
    if a.o:
        open(a.o, "w").write(s)
    else:
        sys.stdout.write(s)
```

```python
import argparse, sys, re
from diag import readout, readout_kd
import genA

TOTAL = 75497472

def mb(mode, T, R, ld, st, dst, loops=1, lds=0, nvpad=0):
    chunk = T * 16 * R
    G = TOTAL // chunk // loops
    assert G * chunk * loops == TOTAL
    o = []
    A = o.append
    A(".globl mb_kernel")
    A(".p2align 8")
    A(".type mb_kernel,@function")
    A("mb_kernel:")
    A("    s_memrealtime s[40:41]")
    A(f"    s_cmp_ge_u32 s2, {G}")
    A("    s_cbranch_scc1 M_done")
    A("    s_load_dwordx2 s[4:5], s[0:1], 0")
    A("    s_load_dwordx2 s[8:9], s[0:1], 24")
    A("    s_load_dwordx2 s[46:47], s[0:1], 40")
    A(f"    s_mul_i32 s3, s2, {chunk}")
    A("    v_lshl_add_u32 v1, v0, 4, s3")
    for j in range(1, R):
        A(f"    s_mov_b32 s{16+j}, {j*T*16}")
    A(f"    s_mov_b32 s14, {loops}")
    A("    s_waitcnt lgkmcnt(0)")
    A(f"    s_mov_b32 s6, {TOTAL}")
    A("    s_mov_b32 s7, 0x20000")
    if dst == "ws":
        A("    s_add_u32 s8, s46, 0x4000000")
        A("    s_addc_u32 s9, s47, 0")
    A(f"    s_mov_b32 s10, {TOTAL}")
    A("    s_mov_b32 s11, 0x20000")
    if mode == "write":
        for r in range(4, 8):
            A(f"    v_mov_b32 v{r}, v0")
    A("M_loop:")
    so = lambda j: "0" if j == 0 else f"s{16+j}"
    if mode in ("read", "copy"):
        for j in range(R):
            A(f"    buffer_load_dwordx4 v[{4+4*j}:{7+4*j}], v1, s[4:7], {so(j)} offen {ld}".rstrip())
    if mode == "copy":
        for j in range(R):
            A(f"    s_waitcnt vmcnt({R-1})")
            A(f"    buffer_store_dwordx4 v[{4+4*j}:{7+4*j}], v1, s[8:11], {so(j)} offen {st}".rstrip())
    if mode == "write":
        for j in range(R):
            A(f"    buffer_store_dwordx4 v[4:7], v1, s[8:11], {so(j)} offen {st}".rstrip())
    if mode == "read":
        A("    s_waitcnt vmcnt(0)")
    if loops > 1:
        A(f"    v_add_u32 v1, {G*chunk}, v1")
        A("    s_sub_u32 s14, s14, 1")
        A("    s_cmp_lg_u32 s14, 0")
        A("    s_cbranch_scc1 M_loop")
    A("    s_memrealtime s[42:43]")
    A("    s_waitcnt vmcnt(0)")
    A("    s_memrealtime s[44:45]")
    A("    s_waitcnt lgkmcnt(0)")
    A("    v_cmp_eq_u32 vcc, 0, v0")
    A("    s_and_saveexec_b64 s[48:49], vcc")
    A("    s_cbranch_execz M_done")
    A("    v_mov_b32 v4, s40")
    A("    v_mov_b32 v5, s42")
    A("    v_mov_b32 v6, s44")
    A("    v_mov_b32 v7, 0")
    A("    s_lshl_b32 s3, s2, 4")
    A("    v_mov_b32 v2, s3")
    A("    global_store_dwordx4 v2, v[4:7], s[46:47]")
    A("M_done:")
    A("    s_endpgm")
    nv = max(8, 4 + 4 * R) + nvpad
    kd = f""".p2align 6
.amdhsa_kernel mb_kernel
  .amdhsa_next_free_vgpr {nv}
  .amdhsa_next_free_sgpr 56
  .amdhsa_accum_offset {(nv+3)//4*4}
  .amdhsa_group_segment_fixed_size 0
  .amdhsa_kernarg_size 48
  .amdhsa_user_sgpr_count 2
  .amdhsa_user_sgpr_kernarg_segment_ptr 1
  .amdhsa_system_sgpr_workgroup_id_x 1
.end_amdhsa_kernel""".split("\n")
    return G, o, kd

def build(mode, T, R, ld, st, dst, q, loops=1, lds=0, nvpad=0):
    G, body, kd = mb(mode, T, R, ld, st, dst, loops, lds, nvpad)
    real = genA.gen(512, "nt", "sc0 sc1")
    lines = [f"; @launch kernel=mb_kernel grid=({G},1,1) block=({T},1,1) lds={lds}",
             "; @launch kernel=readout_kernel grid=(1,1,1) block=(64,1,1) lds=0",
             f"; @launch kernel={genA.NAME} grid=(576,1,1) block=(512,1,1) lds=64"]
    s = re.sub(r"; @launch grid.*\n", "\n".join(lines) + "\n", real)
    Gp = (G + 63) // 64 * 64
    assert Gp == G
    s = s.replace('.section .rodata,"a"', "\n".join(body + readout(G, q)) + '\n.section .rodata,"a"', 1)
    s += "\n".join(kd + readout_kd()) + "\n"
    return s, G

if __name__ == "__main__":
    p = argparse.ArgumentParser()
    p.add_argument("mode")
    p.add_argument("-T", type=int, default=256)
    p.add_argument("-R", type=int, default=4)
    p.add_argument("--loops", type=int, default=1)
    p.add_argument("--ld", default="")
    p.add_argument("--st", default="")
    p.add_argument("--dst", default="out")
    p.add_argument("--lds", type=int, default=0)
    p.add_argument("--nvpad", type=int, default=0)
    p.add_argument("-q", type=int, default=4)
    p.add_argument("-o")
    a = p.parse_args()
    s, G = build(a.mode, a.T, a.R, a.ld, a.st, a.dst, a.q, a.loops, a.lds, a.nvpad)
    open(a.o, "w").write(s)
    print(a.o, "G =", G)
```
